```python
import torch

def _softmax(x, axis=-1):
    return torch.softmax(x, dim=axis)
def _gelu(x):
    return torch.nn.functional.gelu(x, approximate="tanh")
def _silu(x):
    return torch.nn.functional.silu(x)
def _sigmoid(x):
    return torch.sigmoid(x)
def _layernorm(x, axis=-1, eps=1e-5):
    m = x.mean(dim=axis, keepdim=True)
    v = x.var(dim=axis, keepdim=True, unbiased=False)
    return (x - m) / torch.sqrt(v + eps)
def _scatter_add(tgt, idx, src, axis=0):
    return tgt.clone().index_add_(axis, idx, src)
def _segment_sum(src, seg, n):
    out = torch.zeros((n,) + src.shape[1:], dtype=src.dtype)
    return out.index_add_(0, seg, src)
def _pad(x, pw):
    flat = tuple(v for pair in reversed(pw) for v in pair)
    return torch.nn.functional.pad(x, flat)

kernel_name = 'standalone__modern_conv_block_replknet__vision'

def setup_inputs():

    _w = (lambda a: (lambda t: t.to(torch.bfloat16) if t.is_floating_point() else t)(torch.as_tensor(a)))
    H = W = 224
    C = 192
    K = 3
    return {
        "x": _w((lambda *s: torch.randn(*s, dtype=torch.bfloat16) * 0.05)(1, H, W, C)),
        "dw_large": _w((lambda *s: torch.randn(*s, dtype=torch.bfloat16) * 0.4)(K, K, C) * (1.0 / K)),
        "dw_small": _w((lambda *s: torch.randn(*s, dtype=torch.bfloat16) * 0.4)(5, 5, C) * 0.2),
        "w1": _w((lambda *s: torch.randn(*s, dtype=torch.bfloat16) * 0.4)(C, 4 * C) * (C ** -0.5)),
        "w2": _w((lambda *s: torch.randn(*s, dtype=torch.bfloat16) * 0.1)(4 * C, C) * ((4 * C) ** -0.5)),
    }

def reference(x, dw_large, dw_small, w1, w2):
    B, H, W, C = x.shape
    Kl = dw_large.shape[0]
    pl = (Kl - 1) // 2
    xpl = _pad(x, ((0,0),(pl,pl),(pl,pl),(0,0)))
    out = torch.zeros_like(x)
    for i in range(Kl):
        for j in range(Kl):
            out = out + xpl[:, i:i+H, j:j+W, :] * dw_large[i, j][None, None, None, :]
    Ks = dw_small.shape[0]
    ps = (Ks - 1) // 2
    xps = _pad(x, ((0,0),(ps,ps),(ps,ps),(0,0)))
    for i in range(Ks):
        for j in range(Ks):
            out = out + xps[:, i:i+H, j:j+W, :] * dw_small[i, j][None, None, None, :]
    h = _layernorm(out, axis=-1)
    h = _gelu(torch.einsum('bhwc,ce->bhwe', h, w1))
    h = torch.einsum('bhwe,ec->bhwc', h, w2)
    return x + h
```

```python
import sys, os, time
sys.path.insert(0, os.path.dirname(os.path.abspath(__file__)))
from asmrun import *
XB = 224*224*384
def head(nwg):
    return f"""
    s_cmp_ge_u32 s2, {nwg}
    s_cbranch_scc1 L_end_@
    s_memrealtime s[40:41]
    s_load_dwordx2 s[4:5], s[0:1], 0
    s_load_dwordx2 s[6:7], s[0:1], 8
    s_load_dwordx2 s[16:17], s[0:1], 16
    v_lshrrev_b32 v1, 6, v0
    s_nop 0
    v_readfirstlane_b32 s14, v1
    s_waitcnt lgkmcnt(0)
    s_mov_b32 s8, s4
    s_mov_b32 s9, s5
    s_mov_b32 s10, {XB}
    s_mov_b32 s11, 0x20000
    s_mov_b32 s24, s6
    s_mov_b32 s25, s7
    s_mov_b32 s26, {XB}
    s_mov_b32 s27, 0x20000
    s_mov_b32 s3, s2
"""
remap = """
    s_and_b32 s30, s2, 7
    s_lshr_b32 s31, s2, 3
    s_mul_i32 s30, s30, 32
    s_add_u32 s3, s30, s31
"""
coords = """
    s_mul_hi_u32 s31, s3, 0x12492493   ; /14
    s_mul_i32 s30, s31, 14
    s_sub_u32 s30, s3, s30             ; tx
    s_mul_i32 s31, s31, 13             ; y0
    s_lshl_b32 s30, s30, 4             ; x0
"""
tail = """
    s_memrealtime s[42:43]
    s_waitcnt lgkmcnt(0)
    s_lshl_b32 s15, s2, 3
    s_add_u32 s15, s15, s14
    s_lshl_b32 s15, s15, 4
    v_mov_b32 v1, s15
    v_mov_b32 v2, s40
    v_mov_b32 v3, s41
    v_mov_b32 v4, s42
    v_mov_b32 v5, s43
    global_store_dwordx4 v1, v[2:5], s[16:17]
    s_waitcnt vmcnt(0)
L_end_@:
"""
def load_kernel(do_remap, nt=""):
    b = head(256) + (remap if do_remap else "") + "    s_cmp_ge_u32 s3, 252\n    s_cbranch_scc1 L_end_@\n" + coords
    b += """
    s_sub_u32 s31, s31, 2
    s_sub_u32 s30, s30, 2
    s_mul_i32 s31, s31, 86016
    s_mul_i32 s30, s30, 384
    s_add_u32 s31, s31, s30
    s_mov_b32 s33, 0x888889            ; magic /480  (2^32/480 = 8947848.5)
    s_lshl_b32 s34, s14, 10
"""
    for i in range(16):
        b += f"""
    v_add_u32 v2, {i*512}, v0
    v_mul_hi_u32 v3, v2, s33
    v_mul_u32_u24 v4, 480, v3
    v_sub_u32 v4, v2, v4
    v_mul_u32_u24 v3, 0x15000, v3
    v_lshl_add_u32 v3, v4, 4, v3
    v_add_u32 v3, s31, v3
    s_add_u32 m0, s34, {i*8192}
    s_nop 0
    buffer_load_dwordx4 v3, s[8:11], 0 offen {nt} lds
"""
    b += "    s_waitcnt vmcnt(0)\n" + tail
    return b
def store_kernel(pattern, nt=""):
    b = head(256) + remap + "    s_cmp_ge_u32 s3, 252\n    s_cbranch_scc1 L_end_@\n" + coords
    b += """
    s_mul_i32 s31, s31, 86016
    s_mul_i32 s30, s30, 384
    s_add_u32 s31, s31, s30
    s_mov_b32 s33, 0xaaaaab            ; magic /384
    v_mov_b32 v8, 1.0
    v_mov_b32 v9, 1.0
    v_mov_b32 v10, 1.0
    v_mov_b32 v11, 1.0
"""
    for i in range(10):
        if pattern == "lin":
            b += f"    v_add_u32 v2, {i*512}, v0\n"
        elif pattern == "s192":
            pass
        b += """
    v_mul_hi_u32 v3, v2, s33
    v_mul_u32_u24 v4, 384, v3
    v_sub_u32 v4, v2, v4
    v_cmp_gt_u32 vcc, 13, v3
    v_mul_u32_u24 v3, 0x15000, v3
    v_lshl_add_u32 v3, v4, 4, v3
    v_add_u32 v3, s31, v3
    v_cndmask_b32 v3, -1, v3, vcc
""" + f"    buffer_store_dwordx4 v[8:11], v3, s[24:27], 0 offen {nt}\n"
    b += "    s_waitcnt vmcnt(0)\n" + tail
    return b
def store_kernel_strided(run, nt=""):
    b = head(256) + remap + "    s_cmp_ge_u32 s3, 252\n    s_cbranch_scc1 L_end_@\n" + coords
    b += """
    s_mul_i32 s31, s31, 86016
    s_mul_i32 s30, s30, 384
    s_add_u32 s31, s31, s30
    v_mov_b32 v8, 1.0
    v_mov_b32 v9, 1.0
    v_mov_b32 v10, 1.0
    v_mov_b32 v11, 1.0
    v_and_b32 v2, 31, v0          ; pixel in tile32
    v_bfe_u32 v5, v0, 5, 1        ; half
    v_lshrrev_b32 v3, 4, v2
    v_lshl_add_u32 v3, v1, 1, v3  ; row = 2*wave + (px>>4)
    v_and_b32 v2, 15, v2
    v_cmp_gt_u32 vcc, 13, v3
    v_mul_u32_u24 v3, 0x15000, v3
    v_mul_u32_u24 v2, 384, v2
    v_add3_u32 v3, v3, v2, s31
""" + f"    v_mul_u32_u24 v5, {run}, v5\n    v_add_u32 v3, v3, v5\n    v_cndmask_b32 v3, -1, v3, vcc\n"
    for i in range(12):
        off = i*16 if run == 192 else i*32
        b += f"    buffer_store_dwordx4 v[8:11], v3, s[24:27], 0 offen offset:{off} {nt}\n"
    b += "    s_waitcnt vmcnt(0)\n" + tail
    return b

coords14 = """
    s_and_b32 s30, s2, 7
    s_lshr_b32 s31, s2, 3
    s_and_b32 s32, s30, 3
    s_lshr_b32 s33, s30, 2
    s_lshl_b32 s32, s32, 2
    s_lshl_b32 s33, s33, 3
    s_and_b32 s30, s31, 3
    s_lshr_b32 s31, s31, 2
    s_add_u32 s30, s30, s32     ; tx
    s_add_u32 s31, s31, s33     ; ty
    s_mul_i32 s30, s30, 14
    s_mul_i32 s31, s31, 14
"""
def load14(slab, nt=""):
    b = head(256) + coords14 + """
    s_sub_u32 s31, s31, 2
    s_sub_u32 s30, s30, 2
    s_mul_i32 s31, s31, 86016
    s_mul_i32 s30, s30, 384
    s_add_u32 s31, s31, s30
"""
    if slab:
        b += "    s_mov_b32 s33, 0xe38e38f\n    v_and_b32 v6, 7, v0\n    v_lshrrev_b32 v7, 3, v0\n"
        for i in range(11):
            b += f"""
    v_add_u32 v2, {i*32}, v7
    v_mul_hi_u32 v3, v2, s33
    v_mul_u32_u24 v4, 18, v3
    v_sub_u32 v4, v2, v4
    v_cmp_gt_u32 vcc, 18, v3
    v_mul_u32_u24 v3, 0x15000, v3
    v_mul_u32_u24 v4, 384, v4
    v_add3_u32 v3, v3, v4, s31
    v_lshl_add_u32 v3, v6, 4, v3
    v_cndmask_b32 v{10+i}, -1, v3, vcc
"""
        for sl in range(3):
            for i in range(11):
                r = 32 + 4 * (sl * 11 + i)
                b += f"    buffer_load_dwordx4 v[{r}:{r+3}], v{10+i}, s[8:11], 0 offen offset:{sl*128} {nt}\n"
        b += "    s_waitcnt vmcnt(22)\n    s_memrealtime s[44:45]\n    s_waitcnt vmcnt(11)\n    s_memrealtime s[46:47]\n"
    else:
        b += "    s_mov_b32 s33, 0x97b426\n"
        for i in range(31):
            r = 32 + 4 * i
            b += f"""
    v_add_u32 v2, {i*256}, v0
    v_mul_hi_u32 v3, v2, s33
    v_mul_u32_u24 v4, 432, v3
    v_sub_u32 v4, v2, v4
    v_cmp_gt_u32 vcc, 18, v3
    v_mul_u32_u24 v3, 0x15000, v3
    v_lshl_add_u32 v3, v4, 4, v3
    v_add_u32 v3, s31, v3
    v_cndmask_b32 v3, -1, v3, vcc
    buffer_load_dwordx4 v[{r}:{r+3}], v3, s[8:11], 0 offen {nt}
"""
    b += "    s_waitcnt vmcnt(0)\n" + tail
    return b
def store14(run, nt=""):
    b = head(256) + coords14 + """
    s_mul_i32 s31, s31, 86016
    s_mul_i32 s30, s30, 384
    s_add_u32 s31, s31, s30
    v_mov_b32 v8, 1.0
    v_mov_b32 v9, 1.0
    v_mov_b32 v10, 1.0
    v_mov_b32 v11, 1.0
    s_mov_b32 s34, 0x12492493
"""
    if run == 24:
        b += "    s_mov_b32 s33, 0xaaaaaab\n"
        for i in range(19):
            b += f"""
    v_add_u32 v2, {i*256}, v0
    v_mul_hi_u32 v5, v2, s33     ; px
    v_mul_u32_u24 v4, 24, v5
    v_sub_u32 v4, v2, v4         ; chunk
    v_mul_hi_u32 v3, v5, s34     ; y
    v_mul_u32_u24 v6, 14, v3
    v_sub_u32 v6, v5, v6         ; x
    v_cmp_gt_u32 vcc, 14, v3
    v_mul_u32_u24 v3, 0x15000, v3
    v_mul_u32_u24 v6, 384, v6
    v_add3_u32 v3, v3, v6, s31
    v_lshl_add_u32 v3, v4, 4, v3
    v_cndmask_b32 v{20+i}, -1, v3, vcc
"""
    else:
        b += "    s_mov_b32 s33, 0x15555556\n    s_and_b32 s35, s14, 1\n    s_mul_i32 s35, s35, 192\n    s_add_u32 s31, s31, s35\n    s_lshr_b32 s35, s14, 1\n    s_mul_i32 s35, s35, 98*12\n    v_and_b32 v7, 63, v0\n    v_add_u32 v7, s35, v7\n    s_add_u32 s36, s35, 98*12\n"
        for i in range(19):
            b += f"""
    v_add_u32 v2, {i*64}, v7
    v_cmp_gt_u32 vcc, s36, v2
    v_mul_hi_u32 v5, v2, s33     ; px
    v_mul_u32_u24 v4, 12, v5
    v_sub_u32 v4, v2, v4         ; chunk
    v_mul_hi_u32 v3, v5, s34     ; y
    v_mul_u32_u24 v6, 14, v3
    v_sub_u32 v6, v5, v6         ; x
    v_mul_u32_u24 v3, 0x15000, v3
    v_mul_u32_u24 v6, 384, v6
    v_add3_u32 v3, v3, v6, s31
    v_lshl_add_u32 v3, v4, 4, v3
    v_cndmask_b32 v{20+i}, -1, v3, vcc
"""
    b += "    s_memrealtime s[40:41]\n    s_waitcnt lgkmcnt(0)\n"
    for i in range(19): b += f"    buffer_store_dwordx4 v[8:11], v{20+i}, s[24:27], 0 offen {nt}\n"
    b += "    s_waitcnt vmcnt(0)\n" + tail
    return b
ks = {"empty": head(256) + tail, "ld_lin": load14(False), "ld_slab": load14(True), "ld_slab_nt": load14(True, "nt"),
      "ld_slab_t1": load14(True).replace("v_mov_b32 v4, s42", "v_mov_b32 v4, s44").replace("v_mov_b32 v5, s43", "v_mov_b32 v5, s45"),
      "ld_slab_t2": load14(True).replace("v_mov_b32 v4, s42", "v_mov_b32 v4, s46").replace("v_mov_b32 v5, s43", "v_mov_b32 v5, s47"),
      "st24": store14(24), "st12": store14(12), "st24_nt": store14(24, "nt"), "st12_nt": store14(12, "nt"), "st24_sc": store14(24, "sc0 sc1"), "st12_sc": store14(12, "sc0 sc1"), "st12_sc1": store14(12, "sc1")}
kernels = [(n + "_k", b.replace("@", n), 256, None) for n, b in ks.items()]
m = Multi("mb8", kernels)
if not m.gpu: print("built"); sys.exit(0)
cl = m.cl; hip = cl._hip
x0 = cl.DeviceBuffer(XB); x = cl.DeviceBuffer(XB); out = cl.DeviceBuffer(XB); ts = cl.DeviceBuffer(1 << 16); ws = cl.DeviceBuffer(1 << 28)
e0 = ctypes.c_void_p(); e1 = ctypes.c_void_p()
hip.hipEventCreate(ctypes.byref(e0)); hip.hipEventCreate(ctypes.byref(e1))
for mode in ("ws_last", "x_last", "warm"):
    print("mode", mode)
    for n in ks:
        ev = []; ker = []
        for it in range(15):
            if mode == "ws_last":
                hip.hipMemcpy(x._ptr, x0._ptr, XB, 3); hip.hipMemset(out._ptr, 1, XB); hip.hipMemset(ws._ptr, 1, 1 << 28)
            elif mode == "x_last":
                hip.hipMemset(ws._ptr, 1, 1 << 28); hip.hipMemset(out._ptr, 1, XB); hip.hipMemcpy(x._ptr, x0._ptr, XB, 3)
            hip.hipMemset(ts._ptr, 0, 1 << 16)
            hip.hipDeviceSynchronize()
            hip.hipEventRecord(e0, None)
            m.launch(n + "_k", 256, 256, [x.ptr, out.ptr, ts.ptr], lds=140000, sync=False)
            hip.hipEventRecord(e1, None)
            hip.hipDeviceSynchronize()
            ms = ctypes.c_float(); hip.hipEventElapsedTime(ctypes.byref(ms), e0, e1)
            t = ts.to_numpy(np.uint64, (2048, 2)); t = t[t[:, 0] > 0].astype(np.int64)
            ev.append(ms.value * 1e3); ker.append(((t[:, 1].max() - t[:, 0].min()) / 100.0, (t[:, 0].max() - t[:, 0].min()) / 100.0, np.median(t[:, 1] - t[:, 0]) / 100.0))
        ker = np.array(ker)
        print(f"{n:16s} event us med {np.median(ev):7.2f} min {min(ev):7.2f} | in-kernel span {np.median(ker[:,0]):6.2f} start-skew {np.median(ker[:,1]):6.2f} median-wave {np.median(ker[:,2]):6.2f}")
```
